```python
import torch

def _softmax(x, axis=-1):
    return torch.softmax(x, dim=axis)
def _gelu(x):
    return torch.nn.functional.gelu(x, approximate="tanh")
def _silu(x):
    return torch.nn.functional.silu(x)
def _sigmoid(x):
    return torch.sigmoid(x)
def _layernorm(x, axis=-1, eps=1e-5):
    m = x.mean(dim=axis, keepdim=True)
    v = x.var(dim=axis, keepdim=True, unbiased=False)
    return (x - m) / torch.sqrt(v + eps)
def _scatter_add(tgt, idx, src, axis=0):
    return tgt.clone().index_add_(axis, idx, src)
def _segment_sum(src, seg, n):
    out = torch.zeros((n,) + src.shape[1:], dtype=src.dtype)
    return out.index_add_(0, seg, src)
def _pad(x, pw):
    flat = tuple(v for pair in reversed(pw) for v in pair)
    return torch.nn.functional.pad(x, flat)

kernel_name = 'recurrent_scan__softmax_full_mha__geglu_ffn__prompt'

def setup_inputs():

    _w = (lambda a: (lambda t: t.to(torch.bfloat16) if t.is_floating_point() else t)(torch.as_tensor(a)))
    def _A_setup():
        B, S, D = 1, 2048, 576
        return {
            "x": _w((lambda *s: torch.randn(*s, dtype=torch.bfloat16) * 0.05)(B, S, D)),
            "wqkv": _w((lambda *s: torch.randn(*s, dtype=torch.bfloat16) * 0.05)(D, 3 * D)),
            "wo": _w((lambda *s: torch.randn(*s, dtype=torch.bfloat16) * 0.05)(D, D)),
        }
    _A_in = _A_setup()

    def _B_setup():
        B, S, D, F = 1, 2048, 576, 4608
        return {
            "x": _w((lambda *s: torch.randn(*s, dtype=torch.bfloat16) * 0.05)(B, S, D)),
            "w_gate": _w((lambda *s: torch.randn(*s, dtype=torch.bfloat16) * 0.05)(D, F)),
            "w_up": _w((lambda *s: torch.randn(*s, dtype=torch.bfloat16) * 0.05)(D, F)),
            "w_down": _w((lambda *s: torch.randn(*s, dtype=torch.bfloat16) * 0.05)(F, D)),
        }
    _B_in = _B_setup()

    return {
        "A_x": _A_in["x"],
        "A_wqkv": _A_in["wqkv"],
        "A_wo": _A_in["wo"],
        "B_x": _B_in["x"],
        "B_w_gate": _B_in["w_gate"],
        "B_w_up": _B_in["w_up"],
        "B_w_down": _B_in["w_down"],
    }

def reference(A_x, A_wqkv, A_wo, B_x, B_w_gate, B_w_up, B_w_down):
    def _A_ref(x, wqkv, wo):
        B, S, D = x.shape
        H = 32; Dh = D // H
        qkv = (lambda x, *d: x.permute(*d))((x @ wqkv).reshape(B, S, 3, H, Dh), 2, 0, 3, 1, 4)
        q, k, v = qkv[0], qkv[1], qkv[2]
        scale = Dh ** -0.5
        scores = torch.einsum("bhqd,bhkd->bhqk", q, k) * scale
        p = _softmax(scores, axis=-1)
        o = torch.einsum("bhqk,bhkd->bhqd", p, v)
        return (lambda x, *d: x.permute(*d))(o, 0, 2, 1, 3).reshape(B, S, D) @ wo

    def _B_ref(x, w_gate, w_up, w_down):
        return (_gelu(x @ w_gate) * (x @ w_up)) @ w_down

    x = A_x
    xn = _layernorm(x, axis=-1)
    s = _A_ref(xn, A_wqkv, A_wo)
    g = _silu(_B_ref(xn, B_w_gate, B_w_up, B_w_down))
    return x + s * g
```

```python
import re

class Asm:
    def __init__(self):
        self.lines = []
    def __call__(self, s):
        for l in s.split("\n"):
            l = l.strip()
            if l:
                self.lines.append("    " + l)
    def label(self, l):
        self.lines.append(l + ":")
    def raw(self, l):
        self.lines.append(l)
    def comment(self, c):
        self.lines.append("    ; " + c)
    def text(self):
        return "\n".join(self.lines) + "\n"

def vr(base, n=1, pfx="v"):
    return f"{pfx}{base}" if n == 1 else f"{pfx}[{base}:{base+n-1}]"
def ar(base, n=1):
    return vr(base, n, "a")
def sr(base, n=1):
    return vr(base, n, "s")

def kernel_header(name):
    return f""".globl {name}
.p2align 8
.type {name},@function
{name}:
"""

def kernel_desc(name, nvgpr, accum, nsgpr=102):
    return f""".amdhsa_kernel {name}
  .amdhsa_next_free_vgpr {nvgpr}
  .amdhsa_next_free_sgpr {nsgpr}
  .amdhsa_accum_offset {accum}
  .amdhsa_group_segment_fixed_size 0
  .amdhsa_kernarg_size 80
  .amdhsa_user_sgpr_count 2
  .amdhsa_user_sgpr_kernarg_segment_ptr 1
  .amdhsa_system_sgpr_workgroup_id_x 1
.end_amdhsa_kernel
"""

_REG = re.compile(r"\b([vas])(\d+)\b|\b([vas])\[(\d+):(\d+)\]|\b(vcc|exec|m0|scc)\b")
TRANS = ("v_exp_f32", "v_log_f32", "v_rcp_f32", "v_rsq_f32", "v_sqrt_f32", "v_sin_f32", "v_cos_f32")

def regs_of(op):
    out = set()
    for m in _REG.finditer(op):
        if m.group(1):
            out.add((m.group(1), int(m.group(2))))
        elif m.group(3):
            for i in range(int(m.group(4)), int(m.group(5)) + 1):
                out.add((m.group(3), i))
        else:
            out.add((m.group(6), 0))
    return out

def split_ops(rest):
    ops = []; depth = 0; cur = ""
    for ch in rest:
        if ch == "[": depth += 1
        if ch == "]": depth -= 1
        if ch == "," and depth == 0:
            ops.append(cur.strip()); cur = ""
        else:
            cur += ch
    if cur.strip():
        ops.append(cur.strip())
    return ops

class Ins:
    def __init__(self, text):
        self.text = text
        t = text.split(";")[0].strip()
        p = t.split(None, 1)
        self.op = p[0]
        ops = split_ops(p[1]) if len(p) > 1 else []
        self.ops = ops
        op = self.op
        self.kind = "other"
        self.w = set(); self.r = set()
        self.states = 1
        first = lambda s: s.split()[0] if s else s
        if op == "s_nop":
            self.states = int(ops[0], 0) + 1
            self.kind = "nop"
        elif op.startswith("v_mfma"):
            self.kind = "mfma"
            self.w = regs_of(ops[0]); self.ra = regs_of(ops[1]) | regs_of(ops[2]); self.rc = regs_of(first(ops[3]))
            self.r = self.ra | self.rc
            self.passes = 8 if "32x32" in op else 4
        elif op.startswith("v_cmp"):
            self.kind = "valu"; self.w = regs_of(ops[0])
            for o in ops[1:]: self.r |= regs_of(o)
        elif op.startswith("v_permlane") and "swap" in op:
            self.kind = "valu"; self.w = regs_of(ops[0]) | regs_of(ops[1]); self.r = set(self.w)
        elif op.startswith("v_"):
            self.kind = "valu"
            self.w = regs_of(ops[0])
            rest = ops[1:]
            if op.startswith(("v_add_co", "v_addc_co", "v_sub_co", "v_subb_co")):
                self.w |= regs_of(ops[1]); rest = ops[2:]
            for o in rest: self.r |= regs_of(o)
            if op.startswith(("v_fmac", "v_pk_fmac", "v_dot2c")) or "UNUSED_PRESERVE" in t or "dpp" in op or "row_" in t or "quad_perm" in t:
                self.r |= self.w
            if op.startswith("v_cndmask") and len(ops) == 3: self.r.add(("vcc", 0))
        elif op.startswith("buffer_") or op.startswith("global_"):
            self.kind = "vmem"
            lds = t.rstrip().endswith("lds") or " lds" in t
            self.lds = lds
            if "load" in op and not lds:
                self.w = regs_of(ops[0])
                for o in ops[1:]: self.r |= regs_of(o)
            else:
                for o in ops: self.r |= regs_of(o)
                if lds: self.r.add(("m0", 0))
            self.store = "store" in op
            if self.store:
                d = ops[0] if op.startswith("buffer_") else ops[1]
                self.sdata = regs_of(d)
        elif op.startswith("ds_"):
            self.kind = "ds"
            if "read" in op or "bpermute" in op or "permute" in op or "swizzle" in op:
                self.w = regs_of(ops[0])
                for o in ops[1:]: self.r |= regs_of(o)
            else:
                for o in ops: self.r |= regs_of(o)
        elif op.startswith("s_"):
            self.kind = "salu"
            if op.startswith(("s_waitcnt", "s_barrier", "s_branch", "s_cbranch", "s_endpgm", "s_setprio", "s_sleep")):
                pass
            elif op.startswith("s_cmp"):
                for o in ops: self.r |= regs_of(o)
            else:
                self.w = regs_of(ops[0])
                for o in ops[1:]: self.r |= regs_of(o)
        self.dpp = ("row_" in t or "quad_perm" in t or "dpp" in op)

def check_hazards(text, name=""):
    ins = []
    for l in text.split("\n"):
        s = l.split(";")[0].strip()
        if not s or s.endswith(":") or s.startswith("."):
            continue
        ins.append(Ins(s))
    probs = []
    n = len(ins)
    for i, p in enumerate(ins):
        dist = 0
        j = i + 1
        while j < n and dist < 21:
            c = ins[j]
            need = 0; why = ""
            isv = lambda regs: {r for r in regs if r[0] in "va"}
            iss = lambda regs: {r for r in regs if r[0] == "s" or r[0] == "vcc"}
            if p.kind == "mfma":
                big = {8: 12, 4: 8}[p.passes]
                if c.kind == "mfma":
                    if p.w & c.ra: need, why = big, "mfma D->mfma A/B"
                    elif p.w & c.rc:
                        if not (p.w == c.rc and p.passes == c.passes): need, why = {8: 10, 4: 6}[p.passes], "mfma D->mfma C overlap"
                    elif p.w & c.w: need, why = {8: 10, 4: 6}[p.passes], "mfma D->mfma D WAW (conservative)"
                elif c.kind in ("valu", "vmem", "ds"):
                    if p.w & (c.r | c.w): need, why = big, "mfma D->valu/mem"
                    elif c.kind == "valu" and (p.rc & c.w): need, why = {8: 7, 4: 3}[p.passes], "mfma C read->valu write"
            elif p.kind == "valu":
                vw = isv(p.w); sw = iss(p.w)
                if c.kind == "mfma" and (vw & c.r): need, why = 2, "valu->mfma"
                if c.kind == "valu":
                    if p.op.startswith(TRANS) and not c.op.startswith(TRANS) and (vw & c.r): need, why = max(need, 1), "trans->valu"
                    if c.op.startswith("v_permlane") and (vw & c.r): need, why = 2, "valu->permlane"
                    if c.op.startswith(("v_readfirstlane", "v_readlane")) and (vw & c.r): need, why = max(need, 1), "valu->readlane"
                    if c.dpp and (vw & c.r): need, why = 2, "valu->dpp"
                    if sw & c.r: need, why = max(need, 2), "valu sgpr->valu"
                    if ("sdwa" in p.op or "op_sel" in p.text) and (vw & (c.r | c.w)): need, why = max(need, 1), "sdwa/opsel->valu"
                if c.kind == "vmem" and (sw & c.r): need, why = 5, "valu sgpr->vmem"
                if p.op.startswith(TRANS) and c.kind in ("vmem", "ds", "mfma") and (vw & c.r): need, why = max(need, 1), "trans->mem"
            elif p.kind == "vmem" and getattr(p, "store", False) and len(p.sdata) >= 3:
                if c.kind == "valu" and (p.sdata & c.w): need, why = 2, "store data WAR"
                elif c.kind in ("vmem", "ds", "mfma") and (p.sdata & c.w): need, why = 1, "store data WAR"
            elif p.kind == "salu":
                if ("m0", 0) in p.w and c.kind == "vmem" and getattr(c, "lds", False): need, why = 1, "m0->lds dma"
            if need > dist:
                probs.append(f"{name}: [{why}] need {need} have {dist}: '{p.text}' -> '{c.text}'")
            dist += c.states
            j += 1
    return probs

STAMP = False
DBG_OFF = 200 << 20
def stamp_init(a, ws_lo, ws_hi, kidx, sW, sbase=84, vtmp=None):
    if not STAMP: return
    a(f"s_add_u32 s{sbase}, s{ws_lo}, {DBG_OFF + kidx * (1024 * 8 * 256)}")
    a(f"s_addc_u32 s{sbase+1}, s{ws_hi}, 0")
    a(f"s_mov_b32 s{sbase+2}, {1024*8*256}")
    a(f"s_mov_b32 s{sbase+3}, 0x00020000")
    a(f"s_lshl_b32 s{sbase+4}, s2, 3")
    a(f"s_add_u32 s{sbase+4}, s{sbase+4}, s{sW}")
    a(f"s_lshl_b32 s{sbase+4}, s{sbase+4}, 8")
def stamp(a, vtmp, sbase=84, real=False):
    if not STAMP: return
    a(f"s_memtime s[{sbase+6}:{sbase+7}]")
    a(f"s_memrealtime s[{sbase+8}:{sbase+9}]")
    a("s_waitcnt lgkmcnt(0)")
    a(f"v_mov_b32 v{vtmp}, s{sbase+6}")
    a(f"v_mov_b32 v{vtmp+1}, s{sbase+8}")
    a(f"buffer_store_dwordx2 v[{vtmp}:{vtmp+1}], off, s[{sbase}:{sbase+3}], s{sbase+4}")
    a(f"s_add_u32 s{sbase+4}, s{sbase+4}, 8")
```

```python
from asmlib import *
from layout import *

def srd(a, dst, base_lo, base_hi, off, size):
    if off:
        a(f"s_add_u32 s{dst}, s{base_lo}, {off}")
        a(f"s_addc_u32 s{dst+1}, s{base_hi}, 0")
    else:
        a(f"s_mov_b32 s{dst}, s{base_lo}")
        a(f"s_mov_b32 s{dst+1}, s{base_hi}")
    a(f"s_mov_b32 s{dst+2}, {size}")
    a(f"s_mov_b32 s{dst+3}, 0x00020000")

def gen_k0(name="ln_kernel"):
    a = Asm()
    a("s_cmp_ge_u32 s2, 256")
    a("s_cbranch_scc1 L_k0_end")
    a(f"s_load_dwordx2 s[4:5], s[0:1], {KA_X}")
    a(f"s_load_dwordx2 s[6:7], s[0:1], {KA_WS}")
    a("v_lshrrev_b32 v1, 4, v0")
    a("s_lshl_b32 s3, s2, 3")
    a("v_add_u32 v1, s3, v1")
    a("v_and_b32 v2, 15, v0")
    a("v_mul_u32_u24 v3, 1152, v1")
    a("v_lshl_add_u32 v3, v2, 3, v3")
    a("v_lshrrev_b32 v4, 5, v1")
    a("v_mul_u32_u24 v4, 36864, v4")
    a("v_lshrrev_b32 v5, 1, v2")
    a("v_lshl_add_u32 v4, v5, 9, v4")
    a("v_and_b32 v5, 31, v1")
    a("v_lshl_add_u32 v4, v5, 4, v4")
    a("v_and_b32 v5, 1, v2")
    a("v_lshl_add_u32 v4, v5, 3, v4")
    a("s_waitcnt lgkmcnt(0)")
    srd(a, 8, 4, 5, 0, S * D * 2)
    srd(a, 12, 6, 7, XN_OFF, XN_SIZE)
    srd(a, 16, 6, 7, KV_OFF, KV_SIZE)
    L = 8
    for i in range(9):
        a(f"buffer_load_dwordx2 v[{L+2*i}:{L+2*i+1}], v3, s[8:11], 0 offen offset:{128*i}")
    a("v_cmp_gt_u32 vcc, 32, v0")
    a("s_lshl_b32 s3, s2, 5")
    a("v_add_u32 v5, s3, v0")
    a("v_lshrrev_b32 v6, 2, v5")
    a(f"v_mul_u32_u24 v6, {KV_TILE}, v6")
    a("v_and_b32 v7, 3, v5")
    a("v_mul_u32_u24 v7, 304, v7")
    a("v_add_u32 v6, v6, v7")
    a("v_mov_b32 v28, 0x3f803f80")
    a("v_mov_b32 v29, 0x3f803f80")
    a("v_mov_b32 v30, 0x3f803f80")
    a("v_mov_b32 v31, 0x3f803f80")
    a("s_and_saveexec_b64 s[20:21], vcc")
    a("s_cbranch_execz L_k0_skip")
    a(f"buffer_store_dwordx4 v[28:31], v6, s[16:19], 0 offen offset:{1024+288}")
    a.label("L_k0_skip")
    a("s_mov_b64 exec, s[20:21]")
    a("s_waitcnt vmcnt(0)")
    X = 32
    for i in range(18):
        a(f"v_lshlrev_b32 v{X+2*i}, 16, v{L+i}")
        a(f"v_and_b32 v{X+2*i+1}, 0xffff0000, v{L+i}")
    a(f"v_add_f32 v5, v{X}, v{X+1}")
    a(f"v_add_f32 v6, v{X+2}, v{X+3}")
    for i in range(4, 36, 2):
        a(f"v_add_f32 v5, v5, v{X+i}")
        a(f"v_add_f32 v6, v6, v{X+i+1}")
    a("v_add_f32 v5, v5, v6")
    def red(r):
        for sh in (8, 4, 2, 1):
            a("s_nop 1")
            a(f"v_add_f32_dpp v{r}, v{r}, v{r} row_ror:{sh} row_mask:0xf bank_mask:0xf")
    red(5)
    a("v_mul_f32 v5, 0x3ae38e39, v5")
    a(f"v_sub_f32 v7, v{X}, v5")
    a("v_mul_f32 v6, v7, v7")
    for i in range(1, 36):
        a(f"v_sub_f32 v7, v{X+i}, v5")
        a("v_fmac_f32 v6, v7, v7")
    red(6)
    a("v_mul_f32 v6, 0x3ae38e39, v6")
    a("v_cvt_pk_bf16_f32 v5, v5, v6")
    a("v_and_b32 v6, 0xffff0000, v5")
    a("v_lshlrev_b32 v5, 16, v5")
    a("v_add_f32 v6, 0x3727c5ac, v6")
    a("v_cvt_pk_bf16_f32 v6, v6, v6")
    a("v_and_b32 v6, 0xffff0000, v6")
    a("v_sqrt_f32 v6, v6")
    a("s_nop 0")
    a("v_cvt_pk_bf16_f32 v6, v6, v6")
    a("v_and_b32 v6, 0xffff0000, v6")
    a("v_rcp_f32 v6, v6")
    for i in range(18):
        x0, x1 = X + 2 * i, X + 2 * i + 1
        a(f"v_sub_f32 v{x0}, v{x0}, v5")
        a(f"v_sub_f32 v{x1}, v{x1}, v5")
        a(f"v_cvt_pk_bf16_f32 v{x0}, v{x0}, v{x1}")
        a(f"v_and_b32 v{x1}, 0xffff0000, v{x0}")
        a(f"v_lshlrev_b32 v{x0}, 16, v{x0}")
        a(f"v_mul_f32 v{x0}, v{x0}, v6")
        a(f"v_mul_f32 v{x1}, v{x1}, v6")
        a(f"v_cvt_pk_bf16_f32 v{L+i}, v{x0}, v{x1}")
        if i % 2 == 1:
            k = i // 2
            a(f"s_mov_b32 s3, {4096*k}")
            a(f"buffer_store_dwordx2 v[{L+2*k}:{L+2*k+1}], v4, s[12:15], s3 offen")
    a.label("L_k0_end")
    a("s_endpgm")
    return kernel_header(name) + a.text(), kernel_desc(name, 72, 72, 32), f"; @launch kernel={name} grid=(256,1,1) block=(128,1,1) lds=0"
```

```python
from asmlib import *
import asmlib
from layout import *
from sched import *
from k0 import srd
import struct, math

def f32(x):
    return "0x%08x" % struct.unpack("<I", struct.pack("<f", x))[0]

TILE_B = 36864
BUF_B = 2 * TILE_B
vRc = [1, 2]; vRn = [3, 4]; vD = [5, 6]
vOffF, vOffQM, vOffL, vOffV = 7, 8, 9, 10
vLane16 = 11; vC1 = 12; vRL = 13; vTmpA = 14; vTmpB = 15
def AF(slot, buf): return 16 + (slot * 3 + buf) * 4
TMP = 40
def PK(tt): return 64 + 8 * tt
def XF(t, tt):
    idx = t * 2 + tt
    return ar(4 * idx, 4) if idx < 64 else vr(80 + 4 * (idx - 64), 4)
def ACC(st, slot, tt): return 128 + st * 64 + (slot * 2 + tt) * 16
sXN, sWQKV, sWG, sWU, sHF, sQO, sD0, sD1 = 8, 12, 16, 20, 24, 28, 32, 36
sW, sMT, sNG = 40, 41, 42
sSo = [44, 45]; sStr = [46, 47]; sM = 48; sHoff = 49; sF = 50; sCnt = 51
sT0, sT1, sT2, sT3 = 52, 53, 54, 55
sScale = 56; sTile0 = 57; sVnext = 58; sVend = 59; sHs = 60; sTs = 61; sBase = 62; sXoff = 63

C0 = -2.0 * math.sqrt(2.0 / math.pi) * math.log2(math.e)
C1 = C0 * 0.044715

def ffn_epilogue(st):
    out = []
    for tt in range(2):
        G = ACC(st, 0, tt); U = ACC(st, 1, tt)
        for g0 in range(0, 16, 4):
            T = TMP + (g0 // 4 % 2) * 8
            E = T + 4
            for i in range(4): out.append(f"v_mul_f32 v{T+i}, v{G+g0+i}, v{G+g0+i}")
            for i in range(4): out.append(f"v_fmaak_f32 v{T+i}, v{T+i}, v{vC1}, {f32(C0)}")
            for i in range(4): out.append(f"v_mul_f32 v{T+i}, v{T+i}, v{G+g0+i}")
            for i in range(4): out.append(f"v_exp_f32 v{E+i}, v{T+i}")
            for i in range(4): out.append(f"v_mul_f32 v{T+i}, v{G+g0+i}, v{U+g0+i}")
            for i in range(4): out.append(f"v_add_f32 v{E+i}, 1.0, v{E+i}")
            for i in range(4): out.append(f"v_rcp_f32 v{E+i}, v{E+i}")
            for i in range(4): out.append(f"v_mul_f32 v{T+i}, v{T+i}, v{E+i}")
            for i in range(2): out.append(f"v_cvt_pk_bf16_f32 v{PK(tt)+g0//2+i}, v{T+2*i}, v{T+2*i+1}")
            if g0 == 4:
                if tt == 1: out.append(f"s_add_u32 s{sT0}, s{sHoff}, {288*1024}")
                so = sHoff if tt == 0 else sT0
                out.append(("ST", f"buffer_store_dwordx4 v[{PK(tt)}:{PK(tt)+3}], v{vLane16}, s[{sHF}:{sHF+3}], s{so} offen"))
            if g0 == 12:
                so = sHoff if tt == 0 else sT0
                out.append(("ST", f"buffer_store_dwordx4 v[{PK(tt)+4}:{PK(tt)+7}], v{vLane16}, s[{sHF}:{sHF+3}], s{so} offen offset:1024"))
    out.append(f"s_add_u32 s{sHoff}, s{sHoff}, 2048")
    return out

def rd(a, lq, tag, dst, addr, off):
    a(f"ds_read_b64_tr_b16 v[{dst}:{dst+1}], v{addr} offset:{off}")
    lq.push(tag)

def dma_ops(slot, i):
    return [f"s_add_u32 m0, s{sM}, {slot*TILE_B + 4096*i}",
            f"s_nop 0",
            ("DMA", f"buffer_load_dwordx4 v{vD[slot]}, s[{[sD0,sD1][slot]}:{[sD0,sD1][slot]+3}], s{sSo[slot]} offen lds"),
            f"s_add_u32 s{sSo[slot]}, s{sSo[slot]}, s{sStr[slot]}"]

def block(a, nslots, st, fillers=None, swap=False, first=False, ltype=False, vq=None):
    lq = Q("lgkm", 15)
    if vq is None: vq = Q("vm", 63)
    for k in range(2):
        for s in range(2):
            lq.push((k, s)); lq.push((k, s))
    fillers = list(fillers or [])
    nm = 36 * nslots * 2
    per = nslots * 2
    dmas = [dma_ops(s, i) for i in range(9) for s in range(2)]
    if first:
        dma_start, dma_step = 16 * per, 3
    else:
        dma_start, dma_step = 2, (3 if nslots == 2 else 2)
    dma_at = {dma_start + dma_step * n: d for n, d in enumerate(dmas)}
    fstart = 5
    fend = nm - 3
    nf = len(fillers)
    fdone = 0
    def emit(x):
        if isinstance(x, tuple):
            a(x[1]); vq.push(x[0])
        else:
            a(x)
    if ltype:
        a("s_waitcnt lgkmcnt(0)"); lq.clear()
        a(f"v_add_u32 v{vTmpA}, v{vRL}, v{vRc[0]}")
        for k in range(2):
            rd(a, lq, (k, 0), AF(0, k), vTmpA, k * 2048)
            rd(a, lq, (k, 0), AF(0, k) + 2, vTmpA, k * 2048 + 512)
        a(f"v_add_u32 v{vTmpB}, {TILE_B}, v{vTmpA}")
    m = 0
    bar_done = False
    pend_next = []
    for t in range(36):
        rds = []
        if t + 2 < 36:
            k = t + 2
            for s in range(nslots):
                if ltype:
                    ad, off = (vTmpA, k * 2048) if k < 18 else (vTmpB, (k - 18) * 2048)
                    rds.append(((k, s), AF(s, k % 3), ad, off))
                    rds.append(((k, s), AF(s, k % 3) + 2, ad, off + 512))
                else:
                    rds.append(((k, s), AF(s, k % 3), vRc[s], k * 1024))
                    rds.append(((k, s), AF(s, k % 3) + 2, vRc[s], k * 1024 + 256))
        else:
            k = t + 2 - 36
            for s in range(2):
                rds.append((("n", k, s), AF(s, k), vRn[s], k * 1024))
                rds.append((("n", k, s), AF(s, k) + 2, vRn[s], k * 1024 + 256))
        vmn = None
        if first:
            vmn = vq.need([("X", t)])
        n = lq.need([(t, s) for s in range(nslots)])
        w = waitcnt(vmn, n)
        if w: a(w)
        for j in range(per):
            s, tt = j // 2, j % 2
            D = ACC(st, s, tt)
            C = "0" if t == 0 else vr(D, 16)
            A, B = vr(AF(s, t % 3), 4), XF(t, tt)
            if swap: A, B = B, A
            a(f"v_mfma_f32_32x32x16_bf16 {vr(D,16)}, {A}, {B}, {C}")
            if t == 34:
                if j == per // 2 - 1:
                    lq.clear()
                    vmn = vq.need(["DMA"])
                    a(waitcnt(vmn, 0))
                    a("s_barrier")
                    bar_done = True
                if bar_done:
                    left = per - j
                    cnt = -(-len(rds) // left) if j < per - 1 else len(rds)
                    for _ in range(min(cnt, len(rds))): rd(a, lq, *rds.pop(0))
            else:
                left = per - j
                cnt = -(-len(rds) // left)
                for _ in range(cnt): rd(a, lq, *rds.pop(0))
            if first and t + 22 < 36 and j < 2:
                a(f"buffer_load_dwordx4 {XF(t+22, j)}, v{vLane16}, s[{sXN}:{sXN+3}], s{[sXoff, sT3][j]} offen")
                vq.push(("X", t + 22))
                a(f"s_add_u32 s{[sXoff, sT3][j]}, s{[sXoff, sT3][j]}, 1024")
            if m in dma_at:
                for x in dma_at[m]: emit(x)
            if nf and m >= fstart:
                tgt = min(nf, -(-(m - fstart + 1) * nf // (fend - fstart)))
                while fdone < tgt:
                    emit(fillers[fdone]); fdone += 1
            m += 1
    assert fdone == nf
    for s in range(2):
        a(f"v_swap_b32 v{vRc[s]}, v{vRn[s]}")
    a(f"s_xor_b32 s{sM}, s{sM}, s{sT2}")

def set_srd(a, dst, src, size=None):
    a(f"s_mov_b64 s[{dst}:{dst+1}], s[{src}:{src+1}]")
    if size is None:
        a(f"s_mov_b32 s{dst+2}, s{src+2}")
    else:
        a(f"s_mov_b32 s{dst+2}, {size}")

def set_ffn(a, full=True):
    if full:
        set_srd(a, sD0, sWG); set_srd(a, sD1, sWU)
        a(f"v_mov_b32 v{vD[0]}, v{vOffF}"); a(f"v_mov_b32 v{vD[1]}, v{vOffF}")
        a(f"s_mov_b32 s{sStr[0]}, {64*9216}"); a(f"s_mov_b32 s{sStr[1]}, {64*9216}")
    a(f"s_mul_i32 s{sSo[0]}, s{sW}, {16*9216}")
    a(f"s_lshl_b32 s{sT0}, s{sF}, 6")
    a(f"s_add_u32 s{sSo[0]}, s{sSo[0]}, s{sT0}")
    a(f"s_mov_b32 s{sSo[1]}, s{sSo[0]}")
    a(f"s_add_u32 s{sF}, s{sF}, 1")

def set_qm(a):
    set_srd(a, sD0, sWQKV); a(f"s_mov_b32 s{sD1+2}, 0")
    a(f"v_mov_b32 v{vD[0]}, v{vOffQM}")
    a(f"s_mov_b32 s{sStr[0]}, {64*3456}"); a(f"s_mov_b32 s{sStr[1]}, 0")
    a(f"s_mul_i32 s{sSo[0]}, s{sW}, {16*3456}")
    a(f"s_mul_i32 s{sT0}, s{sNG}, 72")
    a(f"s_add_u32 s{sSo[0]}, s{sSo[0]}, s{sT0}")

def set_l(a):
    set_srd(a, sD0, sWQKV); set_srd(a, sD1, sWQKV)
    a(f"v_mov_b32 v{vD[0]}, v{vOffL}"); a(f"v_mov_b32 v{vD[1]}, v{vOffL}")
    a(f"s_mov_b32 s{sStr[0]}, {32*3456}"); a(f"s_mov_b32 s{sStr[1]}, {32*3456}")
    a(f"s_mul_i32 s{sSo[0]}, s{sW}, {8*3456}")
    a(f"s_sub_u32 s{sT0}, s{sNG}, 28")
    a(f"s_mul_i32 s{sT0}, s{sT0}, 576")
    a(f"s_add_u32 s{sSo[0]}, s{sSo[0]}, s{sT0}")
    a(f"s_add_u32 s{sSo[0]}, s{sSo[0]}, 32")
    a(f"s_add_u32 s{sSo[1]}, s{sSo[0]}, {288*3456}")

def set_v(a):
    set_srd(a, sD0, sWQKV); a(f"s_mov_b32 s{sD1+2}, 0")
    a(f"s_cmp_lt_u32 s{sVnext}, s{sVend}")
    a(f"s_cselect_b32 s{sD0+2}, s{sD0+2}, 0")
    a(f"v_mov_b32 v{vD[0]}, v{vOffV}")
    a(f"s_mov_b32 s{sStr[0]}, {64*3456}"); a(f"s_mov_b32 s{sStr[1]}, 0")
    a(f"s_mul_i32 s{sSo[0]}, s{sW}, {16*3456}")
    a(f"s_lshl_b32 s{sT0}, s{sVnext}, 6")
    a(f"s_add_u32 s{sSo[0]}, s{sSo[0]}, s{sT0}")
    a(f"s_add_u32 s{sSo[0]}, s{sSo[0]}, 2304")

def set_none(a):
    a(f"s_mov_b32 s{sD0+2}, 0"); a(f"s_mov_b32 s{sD1+2}, 0")
    a(f"s_mov_b32 s{sStr[0]}, 0"); a(f"s_mov_b32 s{sStr[1]}, 0")
    a(f"s_mov_b32 s{sSo[0]}, 0"); a(f"s_mov_b32 s{sSo[1]}, 0")

QSCALE = math.log2(math.e) / math.sqrt(18.0)

def gen_k1(name="gemm1_kernel"):
    a = Asm()
    a("s_cmp_ge_u32 s2, 256")
    a("s_cbranch_scc1 L_k1_end")
    a(f"s_load_dwordx2 s[4:5], s[0:1], {KA_WQKV}")
    a(f"s_load_dwordx4 s[64:67], s[0:1], {KA_WG}")
    a(f"s_load_dwordx2 s[6:7], s[0:1], {KA_WS}")
    a("v_lshrrev_b32 v1, 6, v0")
    a("v_and_b32 v0, 63, v0")
    a(f"v_readfirstlane_b32 s{sW}, v1")
    a(f"s_lshr_b32 s{sMT}, s2, 3")
    a(f"s_and_b32 s{sMT}, s{sMT}, 7")
    a(f"s_and_b32 s{sNG}, s2, 7")
    a(f"s_lshl_b32 s{sNG}, s{sNG}, 2")
    a(f"s_lshr_b32 s{sT0}, s2, 6")
    a(f"s_add_u32 s{sNG}, s{sNG}, s{sT0}")
    a(f"v_lshlrev_b32 v{vLane16}, 4, v0")
    a("v_lshrrev_b32 v14, 2, v0")
    a("v_and_b32 v15, 3, v0")
    a(f"v_mul_u32_u24 v{vOffF}, 9216, v14")
    a(f"v_lshl_add_u32 v{vOffF}, v15, 4, v{vOffF}")
    a(f"v_mul_u32_u24 v{vOffV}, 3456, v14")
    a(f"v_lshl_add_u32 v{vOffV}, v15, 4, v{vOffV}")
    a("v_lshrrev_b32 v15, 1, v15")
    a(f"v_lshl_add_u32 v{vOffQM}, v15, 3, v{vOffV}")
    a("v_lshrrev_b32 v14, 3, v0")
    a("v_and_b32 v15, 7, v0")
    a(f"v_mul_u32_u24 v{vOffL}, 3456, v14")
    a("v_mul_u32_u24 v15, 72, v15")
    a(f"v_add_u32 v{vOffL}, v{vOffL}, v15")
    a("v_lshrrev_b32 v14, 5, v0")
    a("v_bfe_u32 v15, v0, 2, 2")
    a("v_lshl_add_u32 v14, v14, 3, v15")
    a(f"v_lshlrev_b32 v{vRc[0]}, 6, v14")
    a("v_bfe_u32 v15, v0, 4, 1")
    a(f"v_lshl_add_u32 v{vRc[0]}, v15, 5, v{vRc[0]}")
    a("v_and_b32 v1, 3, v0") if False else None
    a(f"v_and_b32 v{vRL}, 3, v0")
    a(f"v_lshl_add_u32 v{vRc[0]}, v{vRL}, 3, v{vRc[0]}")
    a(f"v_mov_b32 v{vRL}, v{vRc[0]}")
    a(f"v_add_u32 v{vRc[1]}, {TILE_B}, v{vRc[0]}")
    a(f"v_add_u32 v{vRn[0]}, {BUF_B}, v{vRc[0]}")
    a(f"v_add_u32 v{vRn[1]}, {BUF_B+TILE_B}, v{vRc[0]}")
    a(f"v_mov_b32 v{vC1}, {f32(C1)}")
    a("s_waitcnt lgkmcnt(0)")
    srd(a, sXN, 6, 7, XN_OFF, XN_SIZE)
    srd(a, sWQKV, 4, 5, 0, 576 * 1728 * 2)
    srd(a, sWG, 64, 65, 0, 576 * 4608 * 2)
    srd(a, sWU, 66, 67, 0, 576 * 4608 * 2)
    srd(a, sHF, 6, 7, HF_OFF, HF_SIZE)
    srd(a, sQO, 6, 7, QF_OFF, QF_SIZE + QL_SIZE + KV_SIZE)
    a(f"s_mov_b32 s{sD0+3}, 0x00020000"); a(f"s_mov_b32 s{sD1+3}, 0x00020000")
    stamp_init(a, 6, 7, 1, sW)
    stamp(a, 112)
    a(f"s_mul_i32 s{sF}, s{sNG}, 5")
    a(f"s_add_u32 s{sT0}, s{sNG}, 112")
    a(f"s_cmp_ge_u32 s{sNG}, 28")
    a(f"s_cselect_b32 s{sF}, s{sT0}, s{sF}")
    a(f"s_lshl_b32 s{sTile0}, s{sMT}, 3")
    a(f"s_lshl_b32 s{sT0}, s{sW}, 1")
    a(f"s_add_u32 s{sTile0}, s{sTile0}, s{sT0}")
    a(f"s_mul_i32 s{sHoff}, s{sTile0}, {288*1024}")
    a(f"s_lshl_b32 s{sT0}, s{sF}, 11")
    a(f"s_add_u32 s{sHoff}, s{sHoff}, s{sT0}")
    a(f"s_lshl_b32 s{sM}, s{sW}, 10")
    a(f"s_add_u32 s{sT2}, s{sM}, {BUF_B}")
    a(f"s_xor_b32 s{sT2}, s{sT2}, s{sM}")
    set_ffn(a)
    vq = Q("vm", 63)
    for i in range(9):
        for s in range(2):
            for x in dma_ops(s, i):
                if isinstance(x, tuple): a(x[1]); vq.push("DMA0")
                else: a(x)
    a(f"s_xor_b32 s{sM}, s{sM}, s{sT2}")
    a(f"s_mul_i32 s{sXoff}, s{sTile0}, 36864")
    a(f"s_add_u32 s{sT3}, s{sXoff}, 36864")
    for t in range(22):
        for tt in range(2):
            so = [sXoff, sT3][tt]
            a(f"buffer_load_dwordx4 {XF(t, tt)}, v{vLane16}, s[{sXN}:{sXN+3}], s{so} offen offset:{(t%4)*1024}")
            vq.push(("X", t))
        if t % 4 == 3 or t == 21:
            inc = 4096 if t % 4 == 3 else 2048
            a(f"s_add_u32 s{sXoff}, s{sXoff}, {inc}")
            a(f"s_add_u32 s{sT3}, s{sT3}, {inc}")
    a(f"s_cmp_ge_u32 s{sNG}, 28")
    a("s_cbranch_scc1 L_k1_p_qm")
    set_ffn(a, full=False)
    a("s_branch L_k1_p_done")
    a.label("L_k1_p_qm")
    set_qm(a)
    a.label("L_k1_p_done")
    a(waitcnt(vq.need("DMA0")))
    a("s_barrier")
    for k in range(2):
        for s in range(2):
            a(f"ds_read_b64_tr_b16 v[{AF(s,k)}:{AF(s,k)+1}], v{vRc[s]} offset:{k*1024}")
            a(f"ds_read_b64_tr_b16 v[{AF(s,k)+2}:{AF(s,k)+3}], v{vRc[s]} offset:{k*1024+256}")
    stamp(a, 112)
    if asmlib.STAMP: vq.push("stamp")
    block(a, 2, 0, first=True, vq=vq)
    a(f"s_cmp_ge_u32 s{sNG}, 28")
    a("s_cbranch_scc1 L_k1_special")
    a(f"s_mov_b32 s{sCnt}, 0")
    a.label("L_k1_loop")
    set_ffn(a, full=False)
    stamp(a, 112)
    block(a, 2, 1, fillers=ffn_epilogue(0))
    a(f"s_cmp_eq_u32 s{sCnt}, 0")
    a("s_cbranch_scc1 L_k1_f2_ffn")
    set_qm(a)
    a("s_branch L_k1_f2_go")
    a.label("L_k1_f2_ffn")
    set_ffn(a, full=False)
    a.label("L_k1_f2_go")
    stamp(a, 112)
    block(a, 2, 0, fillers=ffn_epilogue(1))
    a(f"s_add_u32 s{sCnt}, s{sCnt}, 1")
    a(f"s_cmp_lt_u32 s{sCnt}, 2")
    a("s_cbranch_scc1 L_k1_loop")
    set_none(a)
    a("s_branch L_k1_qm")
    a.label("L_k1_special")
    set_l(a)
    a.label("L_k1_qm")
    stamp(a, 112)
    block(a, 1, 1, fillers=ffn_epilogue(0))
    stamp(a, 112)
    a(f"s_and_b32 s{sT0}, s{sNG}, 15")
    a(f"s_cmp_ge_u32 s{sNG}, 16")
    a(f"s_mov_b32 s{sHs}, 65536"); a(f"s_cmov_b32 s{sHs}, {KV_HEAD}")
    a(f"s_mov_b32 s{sTs}, 1024"); a(f"s_cmov_b32 s{sTs}, {KV_TILE}")
    a(f"s_mov_b32 s{sBase}, 0"); a(f"s_cmov_b32 s{sBase}, {KV_OFF-QF_OFF}")
    a(f"s_cselect_b32 s{sScale}, 1.0, {f32(QSCALE)}")
    a(f"s_mul_i32 s{sT0}, s{sT0}, s{sHs}")
    a(f"s_lshl_b32 s{sT0}, s{sT0}, 1")
    a(f"s_add_u32 s{sBase}, s{sBase}, s{sT0}")
    a(f"s_mul_i32 s{sT0}, s{sTile0}, s{sTs}")
    a(f"s_add_u32 s{sBase}, s{sBase}, s{sT0}")
    a("s_nop 3")
    for tt in range(2):
        D = ACC(1, 0, tt)
        for i in range(16): a(f"v_mul_f32 v{D+i}, s{sScale}, v{D+i}")
        for i in range(8): a(f"v_cvt_pk_bf16_f32 v{PK(tt)+i}, v{D+2*i}, v{D+2*i+1}")
        a(f"s_add_u32 s{sT0}, s{sBase}, s{sHs}")
        a(f"buffer_store_dwordx4 v[{PK(tt)}:{PK(tt)+3}], v{vLane16}, s[{sQO}:{sQO+3}], s{sBase} offen")
        a(f"buffer_store_dwordx4 v[{PK(tt)+4}:{PK(tt)+7}], v{vLane16}, s[{sQO}:{sQO+3}], s{sT0} offen")
        a(f"s_add_u32 s{sBase}, s{sBase}, s{sTs}")
    if asmlib.STAMP: a("s_waitcnt vmcnt(0)")
    stamp(a, 112)
    a(f"s_cmp_lt_u32 s{sNG}, 28")
    a("s_cbranch_scc1 L_k1_end")
    a(f"s_sub_u32 s{sT0}, s{sNG}, 28")
    a(f"s_mul_i32 s{sVnext}, s{sT0}, 5")
    a(f"s_cmp_eq_u32 s{sNG}, 31")
    a(f"s_cselect_b32 s{sVnext}, 14, s{sVnext}")
    a(f"s_add_u32 s{sVend}, s{sVnext}, 5")
    a(f"s_cmp_ge_u32 s{sNG}, 30")
    a(f"s_cselect_b32 s{sT0}, 1, 0")
    a(f"s_sub_u32 s{sVend}, s{sVend}, s{sT0}")
    set_v(a)
    stamp(a, 112)
    block(a, 1, 1, ltype=True)
    a(f"s_cmp_ge_u32 s{sNG}, 30")
    a(f"s_mov_b32 s{sHs}, 8192"); a(f"s_cmov_b32 s{sHs}, {KV_HEAD}")
    a(f"s_mov_b32 s{sTs}, 128"); a(f"s_cmov_b32 s{sTs}, {KV_TILE}")
    a(f"s_mov_b32 s{sBase}, {QL_OFF-QF_OFF}"); a(f"s_cmov_b32 s{sBase}, {KV_OFF-QF_OFF+2240}")
    a(f"s_cselect_b32 s{sScale}, 1.0, {f32(QSCALE)}")
    a(f"s_and_b32 s{sT0}, s{sNG}, 1")
    a(f"s_lshl_b32 s{sT0}, s{sT0}, 4")
    a(f"s_mul_i32 s{sT0}, s{sT0}, s{sHs}")
    a(f"s_add_u32 s{sBase}, s{sBase}, s{sT0}")
    a(f"s_mul_i32 s{sT0}, s{sTile0}, s{sTs}")
    a(f"s_add_u32 s{sBase}, s{sBase}, s{sT0}")
    a(f"s_lshl_b32 s{sT1}, s{sHs}, 1")
    a(f"v_lshrrev_b32 v{vTmpA}, 5, v0")
    a(f"v_mul_lo_u32 v{vTmpA}, v{vTmpA}, s{sT1}")
    a(f"v_and_b32 v{vTmpB}, 31, v0")
    a(f"v_lshl_add_u32 v{vTmpA}, v{vTmpB}, 2, v{vTmpA}")
    for tt in range(2):
        D = ACC(1, 0, tt)
        for i in range(16): a(f"v_mul_f32 v{D+i}, s{sScale}, v{D+i}")
        for i in range(8): a(f"v_cvt_pk_bf16_f32 v{PK(tt)+i}, v{D+2*i}, v{D+2*i+1}")
        a(f"s_mov_b32 s{sT0}, s{sBase}")
        for j in range(4):
            for b in range(2):
                a(f"buffer_store_dword v{PK(tt)+2*j+b}, v{vTmpA}, s[{sQO}:{sQO+3}], s{sT0} offen")
                if b == 0: a(f"s_add_u32 s{sT0}, s{sT0}, s{sHs}")
                else:
                    a(f"s_add_u32 s{sT0}, s{sT0}, s{sHs}")
                    a(f"s_add_u32 s{sT0}, s{sT0}, s{sT1}")
        a(f"s_add_u32 s{sBase}, s{sBase}, s{sTs}")
    a.label("L_k1_vloop")
    a(f"s_mov_b32 s{sF}, s{sVnext}")
    a(f"s_add_u32 s{sVnext}, s{sVnext}, 1")
    set_v(a)
    stamp(a, 112)
    block(a, 1, 1, swap=True)
    a(f"s_lshl_b32 s{sT0}, s{sF}, 5")
    a(f"v_and_b32 v{vTmpB}, 31, v0")
    a(f"v_add_u32 v{vTmpB}, s{sT0}, v{vTmpB}")
    a(f"v_mul_u32_u24 v{vTmpA}, 3641, v{vTmpB}")
    a(f"v_lshrrev_b32 v{vTmpA}, 16, v{vTmpA}")
    a(f"v_mul_u32_u24 v{TMP}, 18, v{vTmpA}")
    a(f"v_sub_u32 v{vTmpB}, v{vTmpB}, v{TMP}")
    a(f"v_mul_u32_u24 v{vTmpA}, {KV_HEAD}, v{vTmpA}")
    a(f"v_lshl_add_u32 v{vTmpA}, v{vTmpB}, 4, v{vTmpA}")
    a(f"v_lshrrev_b32 v{vTmpB}, 5, v0")
    a(f"v_mul_u32_u24 v{vTmpB}, 304, v{vTmpB}")
    a(f"v_add_u32 v{vTmpA}, v{vTmpA}, v{vTmpB}")
    a(f"s_mul_i32 s{sBase}, s{sTile0}, {KV_TILE}")
    a(f"s_add_u32 s{sBase}, s{sBase}, {KV_OFF-QF_OFF}")
    for tt in range(2):
        D = ACC(1, 0, tt)
        for i in range(8): a(f"v_cvt_pk_bf16_f32 v{PK(tt)+i}, v{D+2*i}, v{D+2*i+1}")
        a(f"buffer_store_dwordx4 v[{PK(tt)}:{PK(tt)+3}], v{vTmpA}, s[{sQO}:{sQO+3}], s{sBase} offen offset:1024")
        a(f"buffer_store_dwordx4 v[{PK(tt)+4}:{PK(tt)+7}], v{vTmpA}, s[{sQO}:{sQO+3}], s{sBase} offen offset:{1024+608}")
        a(f"s_add_u32 s{sBase}, s{sBase}, {KV_TILE}")
    a(f"s_cmp_lt_u32 s{sVnext}, s{sVend}")
    a("s_cbranch_scc1 L_k1_vloop")
    if asmlib.STAMP: a("s_waitcnt vmcnt(0)")
    stamp(a, 112)
    a.label("L_k1_end")
    a("s_endpgm")
    return kernel_header(name) + a.text(), kernel_desc(name, 512, 256, 96), f"; @launch kernel={name} grid=(256,1,1) block=(256,1,1) lds={2*BUF_B}"
```

```python
S = 2048; D = 576; F = 4608; H = 32; DH = 18
XN_OFF = 0
XN_SIZE = 64 * 36 * 1024
QF_OFF = XN_OFF + XN_SIZE
QF_SIZE = 32 * 64 * 1024
QL_OFF = QF_OFF + QF_SIZE
QL_SIZE = 32 * 2048 * 4
KV_OFF = QL_OFF + QL_SIZE
KV_TILE = 2368
KV_HEAD = 64 * KV_TILE
KV_SIZE = 32 * KV_HEAD
HF_OFF = KV_OFF + KV_SIZE
HF_SIZE = 64 * 288 * 1024
OF_OFF = HF_OFF + HF_SIZE
OF_SIZE = 64 * 36 * 1024
FP_OFF = OF_OFF + OF_SIZE
FP_SPLIT = 64 * 18 * 4096
for n in (XN_OFF, QF_OFF, QL_OFF, KV_OFF, HF_OFF, OF_OFF, FP_OFF):
    assert n % 1024 == 0
KA_X, KA_WQKV, KA_WO, KA_BX, KA_WG, KA_WU, KA_WD, KA_OUT, KA_DBG, KA_WS = [8 * i for i in range(10)]
```

```python
class Q:
    def __init__(self, name, maxv):
        self.name = name; self.maxv = maxv; self.q = []
    def push(self, tag):
        self.q.append(tag)
    def need(self, tags):
        if not isinstance(tags, (list, tuple, set)): tags = [tags]
        last = -1
        for i, t in enumerate(self.q):
            if t in tags: last = i
        if last < 0: return None
        n = len(self.q) - 1 - last
        n = min(n, self.maxv)
        self.q = self.q[len(self.q) - n:] if n else []
        return n
    def clear(self):
        self.q = []

def waitcnt(vm=None, lgkm=None):
    p = []
    if vm is not None: p.append(f"vmcnt({vm})")
    if lgkm is not None: p.append(f"lgkmcnt({lgkm})")
    return "s_waitcnt " + " ".join(p) if p else None
```

```python
import sys
sys.path.insert(0, "bench")
from runner import *

HEAD = """
.amdgcn_target "amdgcn-amd-amdhsa--gfx950"
.text
"""
def kern(name, body, iters=200, nv=256, acc=256):
    return f"""
.globl {name}
.p2align 8
.type {name},@function
{name}:
    s_load_dwordx2 s[4:5], s[0:1], 0
    v_lshrrev_b32 v1, 6, v0
    s_nop 1
    v_readfirstlane_b32 s20, v1
    v_mov_b32 v2, 0x3f000000
""" + "".join(f"    v_mov_b32 v{i}, 0x3c003c00\n" for i in range(4, 128)) + f"""
    s_waitcnt lgkmcnt(0)
    s_mov_b32 s8, s4
    s_mov_b32 s9, s5
    s_mov_b32 s10, 4096
    s_mov_b32 s11, 0x00020000
    s_barrier
    s_memtime s[12:13]
    s_waitcnt lgkmcnt(0)
    s_mov_b32 s21, {iters}
L_{name}:
{body}
    s_sub_u32 s21, s21, 1
    s_cmp_lg_u32 s21, 0
    s_cbranch_scc1 L_{name}
    s_nop 15
    s_nop 15
    s_memtime s[14:15]
    s_waitcnt lgkmcnt(0)
    s_sub_u32 s16, s14, s12
    v_mov_b32 v3, s16
    s_lshl_b32 s20, s20, 2
    v_mov_b32 v1, s20
    buffer_store_dword v3, v1, s[8:11], 0 offen
    s_waitcnt vmcnt(0)
    s_endpgm
.section .rodata,"a"
.p2align 6
.amdhsa_kernel {name}
  .amdhsa_next_free_vgpr {nv}
  .amdhsa_next_free_sgpr 102
  .amdhsa_accum_offset {acc}
  .amdhsa_group_segment_fixed_size 0
  .amdhsa_kernarg_size 80
  .amdhsa_user_sgpr_count 2
  .amdhsa_user_sgpr_kernarg_segment_ptr 1
  .amdhsa_system_sgpr_workgroup_id_x 1
.end_amdhsa_kernel
.text
"""
tests = {}
def rep(fmt, n, base=0):
    return "".join("    " + fmt.format(i=base + i) + "\n" for i in range(n))
tests["exp32"] = (rep("v_exp_f32 v{i}, v2", 32, 4), 32)
tests["add32"] = (rep("v_add_f32 v{i}, v2, v2", 32, 4), 32)
tests["fma32"] = (rep("v_fma_f32 v{i}, v2, v2, v2", 32, 4), 32)
tests["pkfma16"] = ("".join(f"    v_pk_fma_f32 v[{4+2*i}:{5+2*i}], v[40:41], v[40:41], v[40:41]\n" for i in range(16)), 16)
tests["cvt32"] = (rep("v_cvt_pk_bf16_f32 v{i}, v2, v2", 32, 4), 32)
tests["exp16add16"] = ("".join(f"    v_exp_f32 v{4+i}, v2\n    v_add_f32 v{40+i}, v2, v2\n" for i in range(16)), 32)
tests["exp16add32"] = ("".join(f"    v_exp_f32 v{4+i}, v2\n    v_add_f32 v{40+i}, v2, v2\n    v_add_f32 v{60+i}, v2, v2\n" for i in range(16)), 48)
tests["mfma32x16"] = ("".join(f"    v_mfma_f32_32x32x16_bf16 v[{64+16*i}:{79+16*i}], v[4:7], v[8:11], v[{64+16*i}:{79+16*i}]\n" for i in range(4)), 4)
tests["mfma32x8"] = ("".join(f"    v_mfma_f32_32x32x8_bf16 v[{64+16*i}:{79+16*i}], v[4:5], v[8:9], v[{64+16*i}:{79+16*i}]\n" for i in range(4)), 4)
tests["mfma16x32"] = ("".join(f"    v_mfma_f32_16x16x32_bf16 v[{64+4*i}:{67+4*i}], v[4:7], v[8:11], v[{64+4*i}:{67+4*i}]\n" for i in range(8)), 8)
tests["mfma16x16"] = ("".join(f"    v_mfma_f32_16x16x16_bf16 v[{64+4*i}:{67+4*i}], v[4:5], v[8:9], v[{64+4*i}:{67+4*i}]\n" for i in range(8)), 8)
tests["mfma32x4_2b"] = ("".join(f"    v_mfma_f32_32x32x4_2b_bf16 v[{64+32*i}:{95+32*i}], v[4:5], v[8:9], v[{64+32*i}:{95+32*i}]\n" for i in range(2)), 2)
def attn(nm=4, ne=16, nc=8, m8=False):
    s = ""
    e = 0; c = 0
    for m in range(nm):
        if m8 and m == 1:
            s += f"    v_mfma_f32_32x32x8_bf16 v[{64+16*m}:{79+16*m}], v[4:5], v[8:9], v[{64+16*m}:{79+16*m}]\n"
        else:
            s += f"    v_mfma_f32_32x32x16_bf16 v[{64+16*m}:{79+16*m}], v[4:7], v[8:11], v[{64+16*m}:{79+16*m}]\n"
        for k in range(ne // nm):
            s += f"    v_exp_f32 v{12+e}, v2\n"; e += 1
            if k % 2 == 1 and c < nc:
                s += f"    v_cvt_pk_bf16_f32 v{40+c}, v2, v2\n"; c += 1
    return s
tests["attn"] = (attn(), 1)
tests["attn_m8"] = (attn(m8=True), 1)
tests["attn_nocvt"] = (attn(nc=0), 1)
tests["exp16cvt8"] = ("".join(f"    v_exp_f32 v{4+2*i}, v2\n    v_exp_f32 v{5+2*i}, v2\n    v_cvt_pk_bf16_f32 v{40+i}, v2, v2\n" for i in range(8)), 1)

if __name__ == "__main__":
    if len(sys.argv) > 1 and sys.argv[1] == "build":
        asm = HEAD + "".join(kern("k_" + n, b, nv=128, acc=128) for n, (b, c) in tests.items())
        assemble(asm, ["k_" + n for n in tests], "mb1", vgpr=128)
        print("ok")
    else:
        out = DeviceBuffer(4096)
        ka = struct.pack("<10Q", out.ptr, *([0] * 9))
        for n, (b, cnt) in tests.items():
            k = AsmKernel("mb1.co", "k_" + n, check=False)
            res = []
            for bs in (64, 256, 512, 768, 1024):
                for rep_ in range(2):
                    k.launch((1, 1, 1), (bs, 1, 1), ka)
                    sync()
                o = out.to_numpy(np.uint32, (1024,))[: bs // 64]
                res.append("bs=%d: %.2f cyc/instr-group(max wave)" % (bs, o.max() / 200.0 / cnt))
            print(n, " | ".join(res))
```

```python
import sys
sys.path.insert(0, "bench")
from runner import *
from runner import _check, _hip
from mb1 import HEAD
def kern(name, mode, payload):
    s = f"""
.globl {name}
.p2align 8
.type {name},@function
{name}:
    s_load_dwordx2 s[4:5], s[0:1], 0
    s_load_dwordx2 s[6:7], s[0:1], 8
    s_load_dwordx2 s[28:29], s[0:1], 16
    s_waitcnt lgkmcnt(0)
    s_mov_b32 s8, s4
    s_mov_b32 s9, s5
    s_mov_b32 s10, 8192
    s_mov_b32 s11, 0x00020000
    s_mov_b32 s12, s6
    s_mov_b32 s13, s7
    s_mov_b32 s14, {256 if mode in ('byte','atomic') else 65536}
    s_mov_b32 s15, 0x00020000
    s_mov_b32 s30, {4<<20}
    s_mov_b32 s31, 0x00020000
    v_lshlrev_b32 v2, 24, v0
    v_mov_b32 v3, 1
    v_lshlrev_b32 v8, 4, v0
    s_mul_i32 s22, s2, 9216
    s_memrealtime s[16:17]
    s_waitcnt lgkmcnt(0)
"""
    for i in range(payload):
        s += f"    buffer_store_dwordx4 v[4:7], v8, s[28:31], s22 offen sc1\n    s_add_u32 s22, s22, 1024\n"
    s += "    s_waitcnt vmcnt(0)\n    s_memrealtime s[24:25]\n"
    if mode == "byte":
        s += "    buffer_store_byte v3, v2, s[12:15], s2 offen sc1\n"
        s += "    s_bfe_u32 s20, s2, 0x30003\n    s_lshl_b32 s20, s20, 5\n    v_and_b32 v4, 7, v0\n    v_lshlrev_b32 v4, 2, v4\n    s_mov_b32 s21, 0x01010101\n"
    elif mode == "atomic":
        s += "    s_lshr_b32 s23, s2, 5\n    s_lshl_b32 s23, s23, 5\n    buffer_atomic_add v3, v2, s[12:15], s23 offen sc1\n"
        s += "    s_bfe_u32 s20, s2, 0x30003\n    s_lshl_b32 s20, s20, 5\n    v_mov_b32 v4, 0\n    s_mov_b32 s21, 32\n"
    elif mode == "wide":
        s += "    s_lshr_b32 s23, s2, 5\n    s_lshl_b32 s23, s23, 8\n    s_and_b32 s26, s2, 31\n    s_lshl_b32 s26, s26, 2\n    s_add_u32 s23, s23, s26\n    buffer_store_dword v3, v2, s[12:15], s23 offen sc1\n"
        s += "    s_bfe_u32 s20, s2, 0x30003\n    s_lshl_b32 s20, s20, 8\n    v_and_b32 v4, 31, v0\n    v_lshlrev_b32 v4, 2, v4\n    s_mov_b32 s21, 1\n"
    elif mode == "line" or mode == "line64":
        sh = 7 if mode == "line" else 6
        s += f"    s_lshl_b32 s23, s2, {sh}\n    buffer_store_dword v3, v2, s[12:15], s23 offen sc1\n"
        s += f"    s_bfe_u32 s20, s2, 0x30003\n    s_lshl_b32 s20, s20, {5+sh}\n    v_and_b32 v4, 31, v0\n    v_lshlrev_b32 v4, {sh}, v4\n    s_mov_b32 s21, 1\n"
    elif mode == "nonce":
        s += "    s_lshl_b32 s23, s2, 20\n    buffer_store_dword v3, v2, s[12:15], s23 offen sc1\n"
        s += "    s_mov_b32 s20, 0\n    v_mov_b32 v4, 0\n    s_mov_b32 s21, 1\n"
    s += f"""
    s_mov_b32 s23, 100000
L_{name}:
    buffer_load_dword v5, v4, s[12:15], s20 offen sc1
    s_sub_u32 s23, s23, 1
    s_waitcnt vmcnt(0)
    s_cbranch_scc1 E_{name}
    v_cmp_ne_u32 vcc, s21, v5
    s_cbranch_vccnz L_{name}
E_{name}:
    s_memrealtime s[18:19]
    s_waitcnt lgkmcnt(0)
    v_mov_b32 v4, s16
    v_mov_b32 v5, s24
    v_mov_b32 v6, s18
    v_mov_b32 v7, s23
    s_lshl_b32 s20, s2, 4
    v_mov_b32 v1, s20
    buffer_store_dwordx4 v[4:7], v1, s[8:11], 0 offen
    s_waitcnt vmcnt(0)
    s_endpgm
.section .rodata,"a"
.p2align 6
.amdhsa_kernel {name}
  .amdhsa_next_free_vgpr 256
  .amdhsa_next_free_sgpr 102
  .amdhsa_accum_offset 256
  .amdhsa_group_segment_fixed_size 0
  .amdhsa_kernarg_size 80
  .amdhsa_user_sgpr_count 2
  .amdhsa_user_sgpr_kernarg_segment_ptr 1
  .amdhsa_system_sgpr_workgroup_id_x 1
.end_amdhsa_kernel
.text
"""
    return s
cfgs = {f"{m}{p}": (m, p) for m in ("line", "line64", "nonce", "wide") for p in (0, 9)}
if __name__ == "__main__":
    if len(sys.argv) > 1 and sys.argv[1] == "build":
        asm = HEAD + "".join(kern("k_" + n, *c) for n, c in cfgs.items())
        assemble(asm, ["k_" + n for n in cfgs], "mb12", vgpr=256)
        print("ok", len(cfgs))
    else:
        out = DeviceBuffer(8192); fl = DeviceBuffer(65536); pay = DeviceBuffer(4 << 20); big = DeviceBuffer(512 << 20)
        ka = struct.pack("<10Q", out.ptr, fl.ptr, pay.ptr, *([0] * 7))
        for n, c in cfgs.items():
            k = AsmKernel("mb12.co", "k_" + n, check=False)
            for rep_ in range(4):
                _check(_hip.hipMemset(big.ptr, 1, 512 << 20))
                _check(_hip.hipMemset(fl.ptr, 0, 65536)); sync()
                k.launch((256, 1, 1), (64, 1, 1), ka, shared_mem=131072)
                sync()
                o = out.to_numpy(np.uint32, (2048,))[:1024].reshape(256, 4).astype(np.int64)
                t0 = o[:, 0].min()
                print("%-8s" % n, "start max %.2f  stores acked max %.2f (mean dur %.2f)  done min %.2f mean %.2f max %.2f us  polls mean %.1f" % ((o[:, 0].max() - t0) / 100, (o[:, 1].max() - t0) / 100, (o[:, 1] - o[:, 0]).mean() / 100, (o[:, 2].min() - t0) / 100, (o[:, 2].mean() - t0) / 100, (o[:, 2].max() - t0) / 100, (100000 - o[:, 3]).mean()))
```
